```python
import torch

def _softmax(x, axis=-1):
    return torch.softmax(x, dim=axis)
def _gelu(x):
    return torch.nn.functional.gelu(x, approximate="tanh")
def _silu(x):
    return torch.nn.functional.silu(x)
def _sigmoid(x):
    return torch.sigmoid(x)
def _layernorm(x, axis=-1, eps=1e-5):
    m = x.mean(dim=axis, keepdim=True)
    v = x.var(dim=axis, keepdim=True, unbiased=False)
    return (x - m) / torch.sqrt(v + eps)
def _scatter_add(tgt, idx, src, axis=0):
    return tgt.clone().index_add_(axis, idx, src)
def _segment_sum(src, seg, n):
    out = torch.zeros((n,) + src.shape[1:], dtype=src.dtype)
    return out.index_add_(0, seg, src)
def _pad(x, pw):
    flat = tuple(v for pair in reversed(pw) for v in pair)
    return torch.nn.functional.pad(x, flat)

kernel_name = 'recurrent_scan__sliding_local_dilated__glu_gated_reglu__prompt'

def setup_inputs():

    _w = (lambda a: (lambda t: t.to(torch.bfloat16) if t.is_floating_point() else t)(torch.as_tensor(a)))
    def _A_setup():
        B, S, D = 1, 2048, 576
        return {
            "x": _w((lambda *s: torch.randn(*s, dtype=torch.bfloat16) * 0.05)(B, S, D)),
            "wqkv": _w((lambda *s: torch.randn(*s, dtype=torch.bfloat16) * 0.2)(D, 3 * D)),
            "wo": _w((lambda *s: torch.randn(*s, dtype=torch.bfloat16) * 0.2)(D, D)),
        }
    _A_in = _A_setup()

    def _B_setup():
        B, S, D, F = 1, 2048, 576, 4608
        return {
            "x": _w((lambda *s: torch.randn(*s, dtype=torch.bfloat16) * 0.05)(B, S, D)),
            "W_gate": _w((lambda *s: torch.randn(*s, dtype=torch.bfloat16) * 0.1)(D, F) * (2.0 / D) ** 0.5),
            "W_up": _w((lambda *s: torch.randn(*s, dtype=torch.bfloat16) * 0.1)(D, F) * (2.0 / D) ** 0.5),
            "W_down": _w((lambda *s: torch.randn(*s, dtype=torch.bfloat16) * 0.1)(F, D) * (1.0 / F) ** 0.5),
        }
    _B_in = _B_setup()

    return {
        "A_x": _A_in["x"],
        "A_wqkv": _A_in["wqkv"],
        "A_wo": _A_in["wo"],
        "B_x": _B_in["x"],
        "B_W_gate": _B_in["W_gate"],
        "B_W_up": _B_in["W_up"],
        "B_W_down": _B_in["W_down"],
    }

def reference(A_x, A_wqkv, A_wo, B_x, B_W_gate, B_W_up, B_W_down):
    def _A_ref(x, wqkv, wo):
        B, S, D = x.shape
        H = 32; Dh = D // H
        W, dil = 8, 2
        qkv = (lambda x, *d: x.permute(*d))((x @ wqkv).reshape(B, S, 3, H, Dh), 2, 0, 3, 1, 4)
        q, k, v = qkv[0], qkv[1], qkv[2]
        scale = Dh ** -0.5
        pos = torch.arange(S)
        off = torch.arange(W) * dil
        idx = pos[:, None] - off[None, :]
        mask = idx >= 0
        idx_c = torch.where(mask, idx, 0).reshape(-1)
        kg = k[:, :, idx_c, :].reshape(B, H, S, W, Dh)
        vg = v[:, :, idx_c, :].reshape(B, H, S, W, Dh)
        logits = torch.einsum("bhsd,bhswd->bhsw", q, kg) * scale
        logits = torch.where(mask[None, None, :, :], logits, -1e9)
        attn = _softmax(logits, axis=-1)
        o = torch.einsum("bhsw,bhswd->bhsd", attn, vg)
        return (lambda x, *d: x.permute(*d))(o, 0, 2, 1, 3).reshape(B, S, D) @ wo

    def _B_ref(x, W_gate, W_up, W_down):
        gate = torch.einsum("bsd,df->bsf", x, W_gate)
        up = torch.einsum("bsd,df->bsf", x, W_up)
        gate = gate * (lambda x, dt: x.to(dt))(gate > 0, gate.dtype)
        h = gate * up
        return torch.einsum("bsf,fd->bsd", h, W_down)

    x = A_x
    xn = _layernorm(x, axis=-1)
    s = _A_ref(xn, A_wqkv, A_wo)
    g = _silu(_B_ref(xn, B_W_gate, B_W_up, B_W_down))
    return x + s * g
```

```python
import sys, os
sys.path.insert(0, os.path.dirname(__file__))
from core import *
import k1
def make(k1kw=None, with_k2=True, k2kw=None):
    k1kw = k1kw or {}
    hdr = '; @launch kernel=k1_kernel grid=(256,1,1) block=(256,1,1) lds=163840\n'
    if with_k2: hdr += '; @launch kernel=k2_kernel grid=(288,1,1) block=(256,1,1) lds=73728\n'
    hdr += '.amdgcn_target "amdgcn-amd-amdhsa--gfx950"\n.text\n'
    t1, g1 = k1.gen_k1('k1_kernel', **k1kw)
    txt = hdr + t1
    desc = kdesc('k1_kernel', 512, 256, 96)
    if with_k2:
        import k2
        t2, g2 = k2.gen_k2('k2_kernel', **(k2kw or {}))
        txt += t2; desc += '.p2align 6\n' + kdesc('k2_kernel', g2.nvgpr, g2.accum, 96)
    txt += 'L_codeend:\n.section .rodata,"a"\n.p2align 6\n' + desc
    return txt
if __name__ == '__main__':
    t = make(with_k2=False)
    open('k1test.s', 'w').write(t)
    print(len(t), 'bytes', t.count('\n'), 'lines')
```

```python
import re

REG_RE = re.compile(r'^(v|a|s)(\d+)$|^(v|a|s)\[(\d+):(\d+)\]$')
def regs_of(tok):
    tok = tok.strip()
    if tok.startswith('-'): tok = tok[1:]
    if tok.startswith('abs(') : tok = tok[4:-1]
    if tok in ('vcc', 'exec', 'm0', 'scc'): return [(tok, 0)]
    m = REG_RE.match(tok)
    if not m: return []
    if m.group(1): return [(m.group(1), int(m.group(2)))]
    return [(m.group(3), i) for i in range(int(m.group(4)), int(m.group(5)) + 1)]

TRANS = ('v_exp_f32', 'v_rcp_f32', 'v_rsq_f32', 'v_log_f32', 'v_sqrt_f32')
RMW = ('v_fmac_f32', 'v_dot2c_f32_bf16', 'v_pk_fmac')

class Ins:
    __slots__ = ('text', 'op', 'cls', 'w', 'r', 'srcC', 'srcAB', 'nopv')
    def __init__(self, text):
        self.text = text
        t = text.split(';')[0].strip()
        self.nopv = 0
        self.srcC = []; self.srcAB = []
        if t.endswith(':') or t.startswith('.'):
            self.op = 'label'; self.cls = 'label'; self.w = []; self.r = []; return
        sp = t.split(None, 1)
        op = sp[0]; self.op = op
        rest = sp[1] if len(sp) > 1 else ''
        toks = [x.strip() for x in rest.split(',')] if rest else []
        if toks:
            toks[-1] = toks[-1].split()[0]
        R = [regs_of(x) for x in toks]
        flat = lambda L: [x for l in L for x in l]
        if op.startswith('v_mfma'):
            self.cls = 'mfma'; self.w = R[0]; self.srcAB = R[1] + R[2]; self.srcC = R[3]; self.r = self.srcAB + self.srcC
        elif op.startswith('v_'):
            self.cls = 'trans' if op.replace('_e32','').replace('_e64','') in TRANS else 'valu'
            if op.startswith('v_permlane') :
                self.w = R[0] + R[1]; self.r = R[0] + R[1]
            elif op.startswith('v_cmp'):
                self.w = R[0]; self.r = flat(R[1:])
            else:
                self.w = R[0]; self.r = flat(R[1:])
                if any(op.startswith(x) for x in RMW): self.r = self.r + R[0]
                if op.startswith('v_cndmask') and len(toks) == 3: self.r = self.r + [('vcc', 0)]
        elif op.startswith('ds_read'):
            self.cls = 'ds'; self.w = R[0]; self.r = flat(R[1:])
        elif op.startswith('ds_write'):
            self.cls = 'ds'; self.w = []; self.r = flat(R)
        elif op.startswith('buffer_load') or op.startswith('global_load'):
            self.cls = 'vmem'
            if re.search(r'\blds\b', rest):
                self.w = []; self.r = flat(R) + [('m0', 0)]; self.op = op + '_lds'
            else:
                self.w = R[0]; self.r = flat(R[1:])
        elif op.startswith('buffer_store') or op.startswith('global_store') or op.startswith('buffer_atomic'):
            self.cls = 'vmem'; self.w = []; self.r = flat(R)
        elif op == 's_nop':
            self.cls = 'nop'; self.w = []; self.r = []; self.nopv = int(toks[0])
        elif op.startswith('s_'):
            self.cls = 'salu'
            if op.startswith(('s_cmp', 's_bitcmp', 's_waitcnt', 's_barrier', 's_cbranch', 's_branch', 's_endpgm', 's_setprio', 's_sleep')):
                self.w = []; self.r = flat(R)
            else:
                self.w = R[0] if R else []; self.r = flat(R[1:])
        else:
            raise ValueError('unknown instr ' + text)

class K:
    def __init__(self):
        self.ins = []
        self.vm = 0; self.vm_done = 0
        self.lg = 0; self.lg_done = 0
    def I(self, text):
        for l in text.split('\n'):
            l = l.strip()
            if l: self.ins.append(Ins(l))
    def label(self, name): self.ins.append(Ins(name + ':'))
    def raw(self, text): self.ins.append(Ins(text))
    def VM(self, text):
        self.I(text); self.vm += 1; return self.vm
    def DS(self, text):
        self.I(text); self.lg += 1; return self.lg
    def wait_vm(self, tok):
        if tok is None or tok <= self.vm_done: return
        n = min(self.vm - tok, 63)
        self.I(f's_waitcnt vmcnt({n})'); self.vm_done = self.vm - n
    def wait_lg(self, tok):
        if tok is None or tok <= self.lg_done: return
        n = min(self.lg - tok, 15)
        self.I(f's_waitcnt lgkmcnt({n})'); self.lg_done = self.lg - n
    def wait_all(self):
        self.I('s_waitcnt vmcnt(0) lgkmcnt(0)'); self.vm_done = self.vm; self.lg_done = self.lg
    def wait_lg_all(self): self.wait_lg(self.lg)
    def wait_vm_all(self): self.wait_vm(self.vm)

    def finalize(self):
        out = []
        pos = 0
        lastw = {}
        lastC = {}
        lastStore = {}
        nnop = 0
        for ins in self.ins:
            if ins.cls == 'label':
                out.append(ins); continue
            if ins.cls == 'nop':
                out.append(ins); pos += ins.nopv + 1; continue
            need = 0
            def req(p, d):
                nonlocal need
                need = max(need, d - (pos - p - 1))
            isvalu = ins.cls in ('valu', 'trans')
            for r in ins.r:
                lw = lastw.get(r)
                if lw is None: continue
                p, c, pi = lw
                if c == 'mfma':
                    if ins.cls == 'mfma':
                        if r in ins.srcAB: req(p, 8)
                        elif r in ins.srcC:
                            if pi.w == ins.srcC: pass
                            else: req(p, 6)
                    elif isvalu or ins.cls in ('vmem', 'ds'): req(p, 8)
                elif c in ('valu', 'trans'):
                    if r[0] in ('v', 'a'):
                        if ins.cls == 'mfma': req(p, 2)
                        if ins.op.startswith('v_permlane'): req(p, 2)
                        if ins.op.startswith(('v_readfirstlane', 'v_readlane')): req(p, 1)
                        if 'dpp' in ins.op or 'row_' in ins.text: req(p, 2)
                        if c == 'trans' and ins.cls == 'valu': req(p, 1)
                    else:
                        if isvalu: req(p, 2)
                        if ins.cls == 'vmem': req(p, 5)
                        if ins.cls == 'salu': req(p, 1)
                elif c == 'salu':
                    if r[0] == 'm0' and ins.cls == 'vmem': req(p, 1)
            for r in ins.w:
                lw = lastw.get(r)
                if lw is not None and lw[1] == 'mfma':
                    p, c, pi = lw
                    if ins.cls == 'mfma':
                        if not (pi.w == ins.w): req(p, 6)
                    else: req(p, 8)
                if isvalu and r in lastC: req(lastC[r], 3)
                if isvalu and r in lastStore: req(lastStore[r], 2)
            while need > 0:
                k = min(need, 16)
                out.append(Ins(f's_nop {k-1}')); pos += k; need -= k; nnop += 1
            out.append(ins)
            for r in ins.w: lastw[r] = (pos, ins.cls, ins)
            if ins.cls == 'mfma':
                for r in ins.srcC: lastC[r] = pos
            if ins.cls == 'vmem' and ('store' in ins.op) and ('x4' in ins.op or 'x3' in ins.op):
                for r in ins.r: lastStore[r] = pos
            pos += 1
        self.out = out
        self.nnop = nnop
        return out
    def text(self):
        o = []
        for i in self.finalize():
            o.append(i.text if i.cls == 'label' else ' ' + i.text)
        return '\n'.join(o) + '\n'

def kdesc(name, vgpr, accum, sgpr=96):
    return f'''.amdhsa_kernel {name}
  .amdhsa_next_free_vgpr {vgpr}
  .amdhsa_next_free_sgpr {sgpr}
  .amdhsa_accum_offset {accum}
  .amdhsa_group_segment_fixed_size 0
  .amdhsa_kernarg_size 80
  .amdhsa_user_sgpr_count 2
  .amdhsa_user_sgpr_kernarg_segment_ptr 1
  .amdhsa_system_sgpr_workgroup_id_x 1
  .amdhsa_float_denorm_mode_32 3
.end_amdhsa_kernel
'''
```

```python
from core import *
import struct
def fhex(x): return hex(struct.unpack('<I', struct.pack('<f', x))[0])

WS_P    = 0
WS_OF   = 40 << 20
WS_HALO = 44 << 20
WS_DBG  = 48 << 20
WS_SIZE = 256 << 20
NS = 11
HB = NS * 8192

S_X, S_QKV, S_WG, S_WU, S_WD, S_WS, S_DBG = 8, 12, 16, 20, 24, 28, 32
sW, sMH, sFH, sJ, sMT, sM0, sOFF, sFFB, sFHB = 48, 49, 50, 51, 52, 53, 54, 55, 56
sT0, sT1, sT2, sT3 = 57, 58, 59, 3
MP = [60, 62, 64, 66]; MC = [68, 70, 72, 74]
sG1, sFHM = 76, 78
sONES, sHI, sC, sNEG = 80, 81, 82, 83
sNOPRED, sFLAGBIT = 84, 85
sPR = 86
def srd(n): return f's[{n}:{n+3}]'
def sp(n): return f's[{n}:{n+1}]'
def vr(n, c=4): return f'v[{n}:{n+c-1}]'
def ar(n, c=4): return f'a[{n}:{n+c-1}]'

vLANE, vT = 0, 1
vDQ0, vDQ1, vDA, vDH, vDB0, vDB1, vDC0, vDC1 = 2, 3, 4, 5, 6, 7, 8, 9
RA = [10, 11, 12, 13]; RB = [14, 15]
ACC0, FR = 16, 80
vRC, vEXW, vEXR, vHW, vHW8, vHR8, vP = 96, 97, 98, 99, 100, 101, 102
vOM, vOE, vHS, vHL, vFS, vFL = 103, 104, 105, 106, 107, 108
vT2, vT3, vT4 = 109, 110, 111
XO = 112
ACC1 = 144
TMP = 208
def xo(ks, i): return XO + 8*ks + 4*i
def xop(rho, ks):
    return ar(16*ks + 4*rho) if ks < 16 else vr(112 + 16*(ks-16) + 4*rho)
def hop(rho, ks): return ar(16*ks + 4*rho)

class K1:
    def __init__(s, P=3, pre=3, stop=None, prefetch=True, stamps=False, pflags=''):
        s.k = K(); s.P = P; s.pre = pre; s.L = NS - 1 - P; s.stop = stop; s.prefetch = prefetch; s.stamps = stamps
        s.pflags = pflags
        s.win = {}
        s.dma_tok = {}
        s.due = []
        s.q_dma = []; s.q_work = []
        s.nstamp = 0; s.rate = 2

    def I(s, t): s.k.I(t)
    def stamp(s):
        if not s.stamps: return
        i = s.nstamp; s.nstamp += 1
        k = s.k
        k.I(f's_memrealtime {sp(88)}')
        k.I('s_waitcnt lgkmcnt(0)'); k.lg_done = k.lg
        k.I(f'v_mov_b32 v{vT}, s88')
        k.I(f's_lshl_b32 s90, s2, 2\ns_add_u32 s90, s90, s{sW}\ns_lshl_b32 s90, s90, 7\ns_add_u32 s90, s90, {WS_DBG + 4*i}')
        k.I(f'v_mov_b32 v{vT2}, 0')
        k.VM(f'buffer_store_dword v{vT}, v{vT2}, {srd(S_WS)}, s90 offen')
    def ringaddr(s, reg, off):
        w = off >> 16
        c = s.win.get(reg, 0)
        if w != c:
            s.I(f'v_add_u32 v{reg}, {hex(((w - c) << 16) & 0xffffffff)}, v{reg}')
            s.win[reg] = w
        return off & 0xffff

    def prologue(s):
        k = s.k; I = s.I
        I('s_cmp_ge_u32 s2, 256\ns_cbranch_scc1 L1_end')
        I('s_load_dwordx4 s[4:7], s[0:1], 0\ns_load_dwordx4 s[36:39], s[0:1], 32\ns_load_dwordx2 s[40:41], s[0:1], 48\ns_load_dwordx4 s[44:47], s[0:1], 64')
        I(f'v_lshrrev_b32 v{vT}, 6, v0\nv_and_b32 v0, 63, v0\nv_readfirstlane_b32 s{sW}, v{vT}')
        I(f's_lshr_b32 s{sMH}, s{sW}, 1\ns_and_b32 s{sFH}, s{sW}, 1')
        I(f's_and_b32 s{sT0}, s2, 7\ns_lshr_b32 s{sT1}, s2, 3\ns_and_b32 s{sT2}, s{sT1}, 1\ns_lshl_b32 s{sJ}, s{sT0}, 1\ns_add_u32 s{sJ}, s{sJ}, s{sT2}\ns_lshr_b32 s{sMT}, s{sT1}, 1')
        I(f's_lshl_b32 s{sM0}, s{sW}, 11')
        I(f'v_and_b32 v{vT2}, 15, v0\nv_lshrrev_b32 v{vT3}, 4, v0')
        I(f's_lshl_b32 s{sT0}, s{sMT}, 7\ns_lshl_b32 s{sT1}, s{sW}, 5\ns_add_u32 s{sT0}, s{sT0}, s{sT1}')
        I(f'v_add_u32 v16, s{sT0}, v{vT2}\nv_mul_u32_u24 v16, 0x480, v16\nv_lshl_add_u32 v16, v{vT3}, 4, v16\nv_add_u32 v17, 0x4800, v16')
        I('s_waitcnt lgkmcnt(0)')
        def mk(d, b, n): I(f's_mov_b32 s{d}, s{b}\ns_and_b32 s{d+1}, s{b+1}, 0xffff\ns_mov_b32 s{d+2}, {n}\ns_mov_b32 s{d+3}, 0x20000')
        mk(S_X, 4, 2048*1152)
        s.xtok = {}
        for ks in range(18):
            for i in range(2):
                s.xtok[ks, i] = k.VM(f'buffer_load_dwordx4 {vr(xo(ks,i))}, v{16+i}, {srd(S_X)}, 0 offen offset:{64*ks}')
        mk(S_QKV, 6, 576*3456); mk(S_WG, 36, 576*9216)
        I(f's_sub_u32 s{S_WU}, s38, 1024\ns_subb_u32 s{S_WU+1}, s39, 0\ns_and_b32 s{S_WU+1}, s{S_WU+1}, 0xffff\ns_mov_b32 s{S_WU+2}, {576*9216+1024}\ns_mov_b32 s{S_WU+3}, 0x20000')
        mk(S_WD, 40, 4608*1152); mk(S_DBG, 44, 256); mk(S_WS, 46, WS_SIZE)
        m, g, t = f'v{vT2}', f'v{vT3}', f'v{vT}'
        I(f'v_mul_u32_u24 v18, 52, v0\nv_lshrrev_b32 v18, 8, v18\nv_min_u32 v18, 11, v18')
        I(f'v_mul_u32_u24 v19, 5, v18\nv_sub_u32 v19, v0, v19\nv_min_u32 v19, 4, v19')
        I(f'v_lshrrev_b32 v20, 2, v18\nv_and_b32 v21, 3, v18')
        I(f's_mul_i32 s{sT0}, s{sJ}, 72\ns_and_b32 s{sT1}, s{sT0}, 15\ns_sub_u32 s{sT0}, s{sT0}, s{sT1}')
        I(f's_lshl_b32 s{sT2}, s{sW}, 3\nv_add_u32 v21, s{sT2}, v21\nv_mul_u32_u24 v21, 0xd80, v21')
        I(f'v_mul_u32_u24 v20, 0x480, v20\nv_add_u32 v21, v21, v20\nv_lshl_add_u32 v21, v19, 4, v21\nv_add_u32 v{vDQ0}, s{sT0}, v21')
        I(f'v_add_u32 v{vDQ1}, {4*3456-1024}, v{vDQ0}')
        for st in range(s.L): s.issue_dma_now(st)
        I(f'v_lshrrev_b32 v18, 2, v0\nv_and_b32 v18, 3, v18\nv_and_b32 v19, 3, v0')
        I(f'v_lshlrev_b32 v20, 11, {g}\nv_mul_u32_u24 v21, 80, v18\nv_add_u32 v20, v20, v21\nv_add_u32 v20, s{sT1}, v20')
        I(f's_mul_i32 s{sT2}, s{sFH}, 40\nv_lshl_add_u32 v21, v19, 3, v20\nv_add_u32 v{RA[0]}, s{sT2}, v21')
        I(f'v_add_u32 v{RA[1]}, 320, v{RA[0]}\nv_add_u32 v{RA[2]}, 640, v{RA[0]}')
        I(f'v_min_u32 v21, 2, v19\nv_mul_u32_u24 v21, 320, v21\nv_add_u32 v21, v21, v20\nv_add_u32 v{RA[3]}, 32, v21')
        I(f's_mul_i32 s{sT0}, s{sJ}, 288\ns_and_b32 s{sT2}, s{sJ}, 1\ns_lshl_b32 s{sT3}, s{sT2}, 5\ns_add_u32 s{sFFB}, s{sT0}, s{sT3}')
        I(f's_xor_b32 s{sT2}, s{sT2}, 1\ns_lshl_b32 s{sT2}, s{sT2}, 8\ns_add_u32 s{sFHB}, s{sT0}, s{sT2}')
        I(f'v_lshrrev_b32 v20, 3, v0\nv_lshrrev_b32 v21, 1, v20\nv_and_b32 v21, 1, v21\ns_lshl_b32 s{sT0}, s{sFH}, 1\nv_or_b32 v21, s{sT0}, v21')
        I(f'v_and_b32 v22, 7, v0\nv_lshrrev_b32 v23, 1, v22\nv_xor_b32 v23, v23, v21\nv_lshlrev_b32 v23, 5, v23\nv_and_b32 v22, 1, v22\nv_lshl_add_u32 v23, v22, 4, v23')
        I(f's_lshl_b32 s{sT0}, s{sW}, 3\nv_add_u32 v20, s{sT0}, v20\nv_mul_u32_u24 v20, 0x2400, v20\nv_add_u32 v20, v20, v23')
        I(f's_lshl_b32 s{sT0}, s{sFFB}, 1\nv_add_u32 v{vDA}, s{sT0}, v20')
        I(f'v_lshrrev_b32 v20, 1, v18\nv_and_b32 v21, 1, {g}\nv_lshl_or_b32 v20, v21, 1, v20')
        I(f'v_lshlrev_b32 v21, 11, {g}\nv_lshl_add_u32 v21, v18, 7, v21\nv_lshl_add_u32 v21, v19, 3, v21')
        for t_ in range(2):
            I(f's_lshl_b32 s{sT0}, s{sFH}, 1\ns_add_u32 s{sT0}, s{sT0}, {t_}\nv_xor_b32 v22, s{sT0}, v20\nv_lshl_add_u32 v{RB[t_]}, v22, 5, v21')
        I(f'v_lshrrev_b32 v20, 2, v0\nv_lshrrev_b32 v21, 3, v20\nv_lshrrev_b32 v22, 1, v19\nv_xor_b32 v22, v22, v21\nv_lshlrev_b32 v22, 5, v22\nv_and_b32 v23, 1, v0\nv_lshl_add_u32 v22, v23, 4, v22')
        I(f's_lshl_b32 s{sT0}, s{sW}, 4\nv_add_u32 v20, s{sT0}, v20\nv_mul_u32_u24 v20, 0x2400, v20\nv_add_u32 v20, v20, v22\ns_lshl_b32 s{sT0}, s{sFHB}, 1\nv_add_u32 v{vDH}, s{sT0}, v20')
        I(f'v_lshrrev_b32 v20, 1, {g}\nv_and_b32 v21, 1, {g}\nv_lshlrev_b32 v20, 11, v20\nv_lshl_add_u32 v22, v21, 3, v18\nv_lshl_add_u32 v20, v22, 6, v20')
        I(f'v_xor_b32 v21, s{sFH}, v21\nv_lshl_add_u32 v20, v21, 5, v20\nv_lshl_add_u32 v{vRC}, v19, 3, v20')
        for i in range(2):
            I(f'v_lshrrev_b32 v20, 1, {m}\nv_add_u32 v21, {4*i}, {g}\nv_xor_b32 v20, v20, v21\nv_lshlrev_b32 v20, 5, v20\nv_and_b32 v22, 1, v0\nv_lshl_add_u32 v20, v22, 4, v20')
            I(f's_lshl_b32 s{sT0}, s{sW}, 3\nv_add_u32 v21, s{sT0}, v21\nv_mul_u32_u24 v21, 0x480, v21\nv_add_u32 v20, v20, v21')
            I(f'v_add_u32 v{vDB0+i}, {hex((-1024*i) & 0xffffffff)}, v20')
        I(f'v_lshrrev_b32 v20, 3, v0\nv_lshrrev_b32 v21, 1, v20\nv_and_b32 v22, 7, v0\nv_lshrrev_b32 v22, 1, v22\nv_xor_b32 v21, v21, v22\nv_lshlrev_b32 v21, 5, v21\nv_and_b32 v22, 1, v0\nv_lshl_add_u32 v21, v22, 4, v21')
        I(f's_lshl_b32 s{sT0}, s{sW}, 4\nv_add_u32 v20, s{sT0}, v20\nv_mul_u32_u24 v20, 0x480, v20\nv_add_u32 v20, v20, v21')
        I(f'v_add_u32 v{vDC0}, 1024, v20\nv_add_u32 v{vDC1}, {8*1152}, v20')
        I(f's_mul_i32 s{sFFB}, s{sFFB}, 1152\ns_mul_i32 s{sFHB}, s{sFHB}, 1152')
        I(f'v_lshlrev_b32 v20, 4, v0\ns_lshl_b32 s{sT0}, s{sW}, 11\ns_add_u32 s{sT0}, s{sT0}, {HB}\nv_add_u32 v{vEXW}, s{sT0}, v20')
        I(f's_lshl_b32 s{sT0}, s{sMH}, 12\ns_add_u32 s{sT0}, s{sT0}, {HB}\nv_add_u32 v{vEXR}, s{sT0}, v20\nv_add_u32 v{vHR8}, 0x10000, v{vEXR}')
        I(f's_lshl_b32 s{sT1}, s{sFH}, 13\nv_add_u32 v{vHW}, s{sT1}, v{vEXR}\ns_lshl_b32 s{sT1}, s{sFH}, 3\nv_add_u32 v{vHW8}, s{sT1}, v{vHR8}')
        I(f's_lshl_b32 s{sT0}, s{sMT}, 3\ns_lshl_b32 s{sT1}, s{sMH}, 2\ns_add_u32 s{sT0}, s{sT0}, s{sT1}')
        I(f's_lshl_b32 s{sT1}, s{sJ}, 7\ns_add_u32 s{sT1}, s{sT1}, s{sT0}\ns_mul_i32 s{sT1}, s{sT1}, {18*1024}\nv_add_u32 v{vP}, s{sT1}, v20')
        I(f's_mul_i32 s{sT1}, s{sT0}, 18\ns_add_u32 s{sT2}, s{sT1}, s{sJ}\ns_lshl_b32 s{sT2}, s{sT2}, 10\ns_lshl_b32 s{sT3}, s{sFH}, 3\ns_add_u32 s{sT2}, s{sT2}, s{sT3}\ns_add_u32 s{sT2}, s{sT2}, {WS_OF}\nv_add_u32 v{vOM}, s{sT2}, v20')
        I(f's_lshr_b32 s{sT2}, s{sJ}, 3\ns_add_u32 s{sT1}, s{sT1}, s{sT2}\ns_add_u32 s{sT1}, s{sT1}, 16\ns_lshl_b32 s{sT1}, s{sT1}, 10')
        I(f's_and_b32 s{sT2}, s{sJ}, 7\ns_lshr_b32 s{sT2}, s{sT2}, 1\ns_lshl_b32 s{sT2}, s{sT2}, 8\ns_add_u32 s{sT1}, s{sT1}, s{sT2}')
        I(f's_and_b32 s{sT2}, s{sJ}, 1\ns_lshl_b32 s{sT2}, s{sT2}, 3\ns_add_u32 s{sT1}, s{sT1}, s{sT2}\ns_lshl_b32 s{sT2}, s{sFH}, 2\ns_add_u32 s{sT1}, s{sT1}, s{sT2}\ns_add_u32 s{sT1}, s{sT1}, {WS_OF}')
        I(f'v_lshlrev_b32 v21, 4, {m}\nv_add_u32 v21, s{sT1}, v21\nv_mov_b32 v22, 0x7ff00000\nv_cmp_eq_u32 vcc, 0, {g}\nv_cndmask_b32 v{vOE}, v22, v21, vcc')
        I(f's_lshl_b32 s{sT0}, s{sMT}, 1\ns_add_u32 s{sT0}, s{sT0}, s{sMH}')
        I(f's_lshl_b32 s{sT1}, s{sJ}, 1\ns_add_u32 s{sT1}, s{sT1}, s{sFH}\ns_lshl_b32 s{sFLAGBIT}, 1, s{sT1}')
        I(f's_lshl_b32 s{sT2}, s{sT0}, 5\ns_add_u32 s{sT2}, s{sT2}, s{sT1}\ns_lshl_b32 s{sT2}, s{sT2}, 11\ns_add_u32 s{sT2}, s{sT2}, {WS_HALO}')
        I(f'v_add_u32 v{vHS}, s{sT2}, v20\nv_add_u32 v{vHL}, {hex((-32*2048) & 0xffffffff)}, v{vHS}')
        I(f's_cmp_eq_u32 s{sT0}, 0\ns_cselect_b32 s{sNOPRED}, 1, 0')
        I(f's_cbranch_scc0 L1_haspred\nv_mov_b32 v{vHL}, 0x7ff00000')
        k.label('L1_haspred')
        I(f's_lshl_b32 s{sT2}, s{sT0}, 2\nv_mov_b32 v21, s{sT2}\nv_mov_b32 v22, 0x7ff00000\nv_cmp_eq_u32 vcc, 0, v0\nv_cndmask_b32 v{vFS}, v22, v21, vcc')
        I(f's_sub_u32 s{sT2}, s{sT2}, 4\ns_max_i32 s{sT2}, s{sT2}, 0\nv_mov_b32 v{vFL}, s{sT2}')
        for jj in range(4):
            I(f'v_lshl_add_u32 v20, {g}, 2, {jj}\nv_xor_b32 v21, v20, {m}\nv_and_b32 v21, 1, v21\nv_add_u32 v22, 2, {m}')
            I(f'v_cmp_eq_u32 {sp(sPR)}, 0, v21\nv_cmp_ge_u32 {sp(MP[jj])}, v20, v22\nv_cmp_le_u32 {sp(MC[jj])}, v20, {m}')
            I(f's_and_b64 {sp(MP[jj])}, {sp(MP[jj])}, {sp(sPR)}\ns_and_b64 {sp(MC[jj])}, {sp(MC[jj])}, {sp(sPR)}')
        I(f'v_cmp_eq_u32 {sp(sG1)}, 1, {g}')
        I(f's_cmp_eq_u32 s{sFH}, 1\ns_cselect_b64 {sp(sFHM)}, -1, 0')
        I(f's_mov_b32 s{sONES}, 0x3f803f80\ns_mov_b32 s{sHI}, 0xffff0000\ns_mov_b32 s{sC}, {fhex(18**-0.5*1.4426950408889634)}\ns_mov_b32 s{sNEG}, 0xff800000')
        if s.prefetch: s.l2_prefetch()

    def l2_prefetch(s):
        k = s.k; I = s.I
        I(f's_getpc_b64 {sp(sPR)}')
        k.label('L1_pc')
        I(f's_mov_b32 s{sT1}, L_codeend-L1_pc-4')
        I(f'v_lshlrev_b32 v20, 7, v0\ns_lshl_b32 s{sT0}, s{sW}, 13\nv_add_u32 v20, s{sT0}, v20')
        for i in range(2):
            I(f'v_min_u32 v21, s{sT1}, v20')
            k.VM(f'global_load_dword v{vT4}, v21, {sp(sPR)}')
            I(f'v_add_u32 v20, 0x8000, v20')
        if s.prefetch == 'code': return
        for mat, sr, extra in ((0, S_WG, 0), (1, S_WU, 1024)):
            for i in range(2):
                base = mat*0
                I(f's_mul_i32 s{sT0}, s{sW}, 81\ns_add_u32 s{sT0}, s{sT0}, {64*i}\nv_add_u32 v20, s{sT0}, v0')
                I(f'v_mul_u32_u24 v21, 0x1c72, v20\nv_lshrrev_b32 v21, 16, v21')
                I(f'v_mul_u32_u24 v22, 9, v21\nv_sub_u32 v22, v20, v22')
                I(f's_mul_i32 s{sT0}, s{sMT}, 36\nv_add_u32 v21, s{sT0}, v21\nv_mul_u32_u24 v21, 0x2400, v21\nv_lshl_add_u32 v21, v22, 6, v21')
                I(f's_mul_i32 s{sT0}, s{sJ}, 576\ns_add_u32 s{sT0}, s{sT0}, {extra}\nv_add_u32 v21, s{sT0}, v21')
                if i == 1: I(f'v_mov_b32 v22, 0x7ff00000\nv_cmp_gt_u32 vcc, 17, v0\nv_cndmask_b32 v21, v22, v21, vcc')
                k.VM(f'buffer_load_dword v{vT4}, v21, {srd(sr)}, 0 offen')
        for i in range(2):
            I(f's_mul_i32 s{sT0}, s{sW}, 81\ns_add_u32 s{sT0}, s{sT0}, {64*i}\nv_add_u32 v20, s{sT0}, v0')
            I(f's_mul_i32 s{sT0}, s{sJ}, 288\ns_mul_i32 s{sT1}, s{sMT}, 18\ns_add_u32 s{sT0}, s{sT0}, s{sT1}\ns_mul_i32 s{sT0}, s{sT0}, 1152')
            I(f'v_lshlrev_b32 v21, 6, v20\nv_add_u32 v21, s{sT0}, v21')
            if i == 1: I(f'v_mov_b32 v22, 0x7ff00000\nv_cmp_gt_u32 vcc, 17, v0\nv_cndmask_b32 v21, v22, v21, vcc')
            k.VM(f'buffer_load_dword v{vT4}, v21, {srd(S_WD)}, 0 offen')
        I(f's_mul_i32 s{sT0}, s{sW}, 54\nv_add_u32 v20, s{sT0}, v0\nv_mul_u32_u24 v21, 0x2aab, v20\nv_lshrrev_b32 v21, 16, v21')
        I(f'v_mul_u32_u24 v22, 6, v21\nv_sub_u32 v22, v20, v22\nv_lshrrev_b32 v23, 1, v22\nv_and_b32 v22, 1, v22')
        I(f's_mul_i32 s{sT0}, s{sMT}, 36\nv_add_u32 v21, s{sT0}, v21\nv_mul_u32_u24 v21, 0xd80, v21\nv_mul_u32_u24 v23, 0x480, v23\nv_add_u32 v21, v21, v23')
        I(f'v_mul_u32_u24 v22, 68, v22\nv_add_u32 v21, v21, v22\ns_mul_i32 s{sT0}, s{sJ}, 72\nv_add_u32 v21, s{sT0}, v21')
        I(f'v_mov_b32 v22, 0x7ff00000\nv_cmp_gt_u32 vcc, 54, v0\nv_cndmask_b32 v21, v22, v21, vcc')
        k.VM(f'buffer_load_dword v{vT4}, v21, {srd(S_QKV)}, 0 offen')

    def dma_items(s, st):
        if st > 139: return []
        slot = (st % NS) * 8192
        m0 = f's_add_u32 m0, s{sM0}, {slot}'
        if st < 18:
            so = f's_mov_b32 s{sOFF}, {st*32*3456}'
            d0 = f'buffer_load_dwordx4 v{vDQ0}, {srd(S_QKV)}, s{sOFF} offen lds'
            d1 = f'buffer_load_dwordx4 v{vDQ1}, {srd(S_QKV)}, s{sOFF} offen offset:1024 lds'
        elif st < 90:
            c, ks = divmod(st - 18, 18)
            so = f's_mov_b32 s{sOFF}, {ks*32*9216 + c*128}'
            d0 = f'buffer_load_dwordx4 v{vDA}, {srd(S_WG)}, s{sOFF} offen lds'
            d1 = f'buffer_load_dwordx4 v{vDA}, {srd(S_WU)}, s{sOFF} offen offset:1024 lds'
        elif st < 99:
            i = st - 90
            so = f's_mov_b32 s{sOFF}, {i*64*9216}'
            d0 = f'buffer_load_dwordx4 v{vDH}, {srd(S_WG)}, s{sOFF} offen lds'
            d1 = f'buffer_load_dwordx4 v{vDH}, {srd(S_WU)}, s{sOFF} offen offset:1024 lds'
        elif st < 135:
            p, ks = divmod(st - 99, 9)
            so = f's_add_u32 s{sOFF}, s{sFFB}, {ks*32*1152 + p*256}' if ks < 8 else f's_add_u32 s{sOFF}, s{sFHB}, {p*256}'
            d0 = f'buffer_load_dwordx4 v{vDB0}, {srd(S_WD)}, s{sOFF} offen lds'
            d1 = f'buffer_load_dwordx4 v{vDB1}, {srd(S_WD)}, s{sOFF} offen offset:1024 lds'
        else:
            i = st - 135
            so = f's_add_u32 s{sOFF}, s{sFFB}, {i*64*1152}' if i < 4 else f's_add_u32 s{sOFF}, s{sFHB}, 0'
            d0 = f'buffer_load_dwordx4 v{vDC0}, {srd(S_WD)}, s{sOFF} offen lds'
            d1 = f'buffer_load_dwordx4 v{vDC1}, {srd(S_WD)}, s{sOFF} offen offset:1024 lds'
        def last():
            s.dma_tok[st] = s.k.VM(d1)
        return [lambda: s.I(m0), lambda: s.I(so), lambda: s.k.VM(d0), last]
    def issue_dma_now(s, st):
        for f in s.dma_items(st): f()

    def layernorm(s):
        k = s.k; I = s.I
        SUM = [[16, 17], [18, 19]]; SQ = [[20, 21], [22, 23]]
        for r in range(16, 24): I(f'v_mov_b32 v{r}, 0')
        for ks in range(18):
            k.wait_vm(s.xtok[ks, 1])
            for q in range(4):
                for i in range(2):
                    x = xo(ks, i) + q
                    I(f'v_dot2c_f32_bf16 v{SUM[i][q&1]}, s{sONES}, v{x}')
                    I(f'v_dot2c_f32_bf16 v{SQ[i][q&1]}, v{x}, v{x}')
        vals = []
        for i in range(2):
            I(f'v_add_f32 v{SUM[i][0]}, v{SUM[i][0]}, v{SUM[i][1]}\nv_add_f32 v{SQ[i][0]}, v{SQ[i][0]}, v{SQ[i][1]}')
            vals += [SUM[i][0], SQ[i][0]]
        for sw in ('v_permlane16_swap_b32', 'v_permlane32_swap_b32'):
            for n, v in enumerate(vals): I(f'v_mov_b32 v{24+n}, v{v}')
            for n, v in enumerate(vals): I(f'{sw} v{v}, v{24+n}')
            for n, v in enumerate(vals): I(f'v_add_f32 v{v}, v{v}, v{24+n}')
        Rr = [28, 30]; Cc = [32, 34]
        I(f's_mov_b32 s{sT0}, 0x3ae38e39\ns_mov_b32 s{sT1}, 0x3727c5ac')
        for i in range(2):
            I(f'v_mul_f32 v{SUM[i][0]}, s{sT0}, v{SUM[i][0]}\nv_mul_f32 v{SQ[i][0]}, s{sT0}, v{SQ[i][0]}')
        for i in range(2):
            I(f'v_fma_f32 v{SQ[i][0]}, -v{SUM[i][0]}, v{SUM[i][0]}, v{SQ[i][0]}\nv_max_f32 v{SQ[i][0]}, 0, v{SQ[i][0]}\nv_add_f32 v{SQ[i][0]}, s{sT1}, v{SQ[i][0]}')
        for i in range(2): I(f'v_rsq_f32 v{Rr[i]}, v{SQ[i][0]}')
        for i in range(2): I(f'v_mul_f32 v{Cc[i]}, v{SUM[i][0]}, v{Rr[i]}\nv_sub_f32 v{Cc[i]}, 0, v{Cc[i]}')
        s.Rr = Rr; s.Cc = Cc
    def normalize(s, kslist):
        I = s.I
        T = [36, 38, 40, 42, 44, 46, 48, 50]
        regs = [(xo(ks, i) + q, i) for ks in kslist for i in range(2) for q in range(4)]
        for b in range(0, len(regs), 4):
            blk = regs[b:b+4]; tt = T[4*((b//4) & 1):][:4]
            for (x, i), t in zip(blk, tt): I(f'v_lshlrev_b32 v{t}, 16, v{x}')
            for (x, i), t in zip(blk, tt): I(f'v_and_b32 v{t+1}, s{sHI}, v{x}')
            for (x, i), t in zip(blk, tt):
                I(f'v_pk_fma_f32 v[{t}:{t+1}], v[{t}:{t+1}], v[{s.Rr[i]}:{s.Rr[i]+1}], v[{s.Cc[i]}:{s.Cc[i]+1}] op_sel_hi:[1,0,0]')
            for (x, i), t in zip(blk, tt): I(f'v_cvt_pk_bf16_f32 v{x}, v{t}, v{t+1}')
    def x_write_items(s, rnd):
        P = s.P; out = []
        for dk in range(P):
            ks = rnd*P + dk
            if ks >= 18: continue
            for i in range(2):
                off = (rnd & 1)*P*8192 + dk*8192 + i*1024
                def f(ks=ks, i=i, off=off):
                    tok = s.k.DS(f'ds_write_b128 v{vEXW}, {vr(xo(ks,i))} offset:{off}')
                    s.due.append((tok, rnd))
                f.due = rnd
                out.append(f)
        return out
    def x_read_items(s, ks):
        P = s.P; rnd = ks // P; out = []
        for rho in range(4):
            off = (rnd & 1)*P*8192 + (ks % P)*8192 + rho*1024
            def f(rho=rho, off=off):
                s.btok[('x', ks)] = s.k.DS(f'ds_read_b128 {xop(rho, ks)}, v{vEXR} offset:{off}')
            out.append(f)
        return out
    def h_read_items(s, ks):
        out = []
        for rho in range(4):
            def f(rho=rho):
                if ks < 8: t = s.k.DS(f'ds_read_b128 {hop(rho, ks)}, v{vEXR} offset:{ks*8192 + rho*1024}')
                else: t = s.k.DS(f'ds_read_b128 {hop(rho, ks)}, v{vHR8} offset:{rho*1024}')
                s.btok[('h', ks)] = t
            out.append(f)
        return out

    def build_groups(s):
        G = []
        def grp(step, pos, areg, off0, doff, mf, btoks=(), first=False):
            G.append(dict(step=step, pos=pos, areg=areg, off0=off0, doff=doff, mf=mf, btoks=btoks))
        def mfA(acc, rho, b, zero):
            return lambda fr: f'v_mfma_f32_16x16x32_bf16 {vr(acc)}, {vr(fr)}, {b}, {"0" if zero else vr(acc)}'
        def mfB(acc, rho, a, zero):
            return lambda fr: f'v_mfma_f32_16x16x32_bf16 {vr(acc)}, {a}, {vr(fr)}, {"0" if zero else vr(acc)}'
        for st in range(140):
            slot = (st % NS) * 8192
            if st < 18:
                ks = st
                for q in range(4):
                    areg = [RA[0], RA[1], RA[3], RA[2]][q]
                    mk = mfB if q == 3 else mfA
                    mf = [mk(ACC0 + 16*q + 4*r, r, xop(r, ks), ks == 0) for r in range(4)]
                    grp(st, q, areg, slot, 1024, mf, btoks=[('x', ks)] if q == 0 else ())
            elif st < 90:
                c, ks = divmod(st - 18, 18); acc = ACC0 if c % 2 == 0 else ACC1
                for q in range(4):
                    t, mat = q >> 1, q & 1
                    mf = [mfA(acc + 16*q + 4*r, r, xop(r, ks), ks == 0) for r in range(4)]
                    grp(st, q, RB[t], slot + mat*1024, 512, mf)
            elif st < 99:
                i = st - 90
                for q in range(4):
                    kk, mat = q >> 1, q & 1; ks = 2*i + kk
                    mf = [mfA(ACC0 + 16*mat + 4*r, r, xop(r, ks), ks == 0) for r in range(4)]
                    grp(st, q, vRC, slot + kk*4096 + mat*1024, 256, mf)
            elif st < 135:
                p, ks = divmod(st - 99, 9); acc = ACC1 if p % 2 == 0 else ACC0
                for q in range(4):
                    mf = [mfA(acc + 16*q + 4*r, r, hop(r, ks), ks == 0) for r in range(4)]
                    grp(st, q, RA[q], slot, 4096, mf, btoks=[('h', ks)] if (q == 0 and p == 0) else ())
            else:
                i = st - 135
                for q in range(4):
                    kk, t = q >> 1, q & 1; ks = 2*i + kk
                    if ks > 8: continue
                    mf = [mfA(ACC1 + 16*t + 4*r, r, hop(r, ks), ks == 0) for r in range(4)]
                    grp(st, q, RB[t], slot + kk*4096, 2048, mf)
        return G

    def emit_read(s, idx, half):
        g = s.G[idx]; fr = FR + 4*(idx % (s.pre + 1))
        off = s.ringaddr(g['areg'], g['off0'] + half*g['doff'])
        tok = s.k.DS(f'ds_read_b64_tr_b16 v[{fr+2*half}:{fr+2*half+1}], v{g["areg"]} offset:{off}')
        g['tok'] = tok
    def barrier(s, kidx):
        k = s.k; P = s.P
        for f in s.q_work: assert getattr(f, 'due', 10**9) > kidx, ('write not issued before its barrier', kidx)
        for (t, b) in s.due: assert b >= kidx, ('missed barrier', b, kidx)
        toks = [s.dma_tok[st] for st in range(P*kidx, min(P*kidx + P, 140))]
        k.wait_vm(max(toks))
        due = [t for (t, b) in s.due if b <= kidx]
        s.due = [(t, b) for (t, b) in s.due if b > kidx]
        if due: k.wait_lg(max(due))
        k.I('s_barrier')
    def pop(s, n):
        while n > 0:
            if s.q_dma: s.q_dma.pop(0)()
            elif s.q_work: s.q_work.pop(0)()
            else: break
            n -= 1
    def drain_work(s):
        while s.q_work: s.q_work.pop(0)()

    def run_groups(s, a, b, hooks, prime=True):
        k = s.k; G = s.G; pre = s.pre; P = s.P
        for idx in range(a, b):
            g = G[idx]; st = g['step']
            if g['pos'] == 0:
                while s.q_dma: s.q_dma.pop(0)()
                s.q_dma += s.dma_items(st + s.L)
                if st in hooks: hooks[st]()
            nx = idx + pre
            have = nx < len(G) and nx < s.read_limit
            if have and G[nx]['pos'] == 0 and G[nx]['step'] % P == 0:
                s.barrier(G[nx]['step'] // P)
                for f in s.after_barrier.pop(G[nx]['step'], ()): f()
            elif have and G[nx]['pos'] == 0:
                for f in s.after_barrier.pop(G[nx]['step'], ()): f()
            for bt in g['btoks']: k.wait_lg(s.btok[bt])
            k.wait_lg(g['tok'])
            fr = FR + 4*(idx % (pre + 1))
            mf = g['mf']
            k.I(mf[0](fr))
            if have: s.emit_read(nx, 0)
            k.I(mf[1](fr))
            if have: s.emit_read(nx, 1)
            k.I(mf[2](fr))
            s.pop(s.rate)
            k.I(mf[3](fr))
            s.pop(s.rate)
    def prime(s, idx):
        for i in range(idx, idx + s.pre):
            s.emit_read(i, 0); s.emit_read(i, 1)

    def act_items(s, acc, c):
        out = []; I = s.I; wr_due = s.cur_due
        for rho in range(4):
            hp = TMP + 4*(rho & 1)
            for t in range(2):
                g0 = acc + 32*t + 4*rho; u0 = g0 + 16
                for j in range(4): out.append(lambda g=g0+j: I(f'v_max_f32 v{g}, 0, v{g}'))
                for j in range(4): out.append(lambda g=g0+j, u=u0+j: I(f'v_mul_f32 v{g}, v{g}, v{u}'))
                for jj in range(2): out.append(lambda d=hp+2*t+jj, g=g0+2*jj: I(f'v_cvt_pk_bf16_f32 v{d}, v{g}, v{g+1}'))
            def wr(rho=rho, hp=hp):
                tok = s.k.DS(f'ds_write_b128 v{vHW}, {vr(hp)} offset:{c*16384 + rho*1024}')
                s.due.append((tok, wr_due))
            wr.due = wr_due
            out.append(wr)
        return out
    def act_half_items(s, acc):
        out = []; I = s.I; wr_due = s.cur_due
        for rho in range(4):
            hp = TMP + 8 + 2*(rho & 1)
            g0 = acc + 4*rho; u0 = g0 + 16
            for j in range(4): out.append(lambda g=g0+j: I(f'v_max_f32 v{g}, 0, v{g}'))
            for j in range(4): out.append(lambda g=g0+j, u=u0+j: I(f'v_mul_f32 v{g}, v{g}, v{u}'))
            for jj in range(2): out.append(lambda d=hp+jj, g=g0+2*jj: I(f'v_cvt_pk_bf16_f32 v{d}, v{g}, v{g+1}'))
            def wr(rho=rho, hp=hp):
                tok = s.k.DS(f'ds_write_b64 v{vHW8}, v[{hp}:{hp+1}] offset:{rho*1024}')
                s.due.append((tok, wr_due))
            wr.due = wr_due
            out.append(wr)
        return out
    def out_items(s, acc, p):
        out = []; I = s.I
        npair = 2 if p < 4 else 1
        n = 0
        for rho in range(4):
            for u in range(npair):
                op = TMP + 16 + 4*(n % 4); n += 1
                for tt in range(2):
                    a0 = acc + 16*(2*u + tt) + 4*rho
                    for jj in range(2): out.append(lambda d=op+2*tt+jj, a=a0+2*jj: I(f'v_cvt_pk_bf16_f32 v{d}, v{a}, v{a+1}'))
                def st(rho=rho, u=u, op=op):
                    base = rho*18432 + ((4*p + u) if p < 4 else 16)*1024
                    mul = 2048 if p < 4 else 1024
                    I(f's_mul_i32 s{sT0}, s{sFH}, {mul}\ns_add_u32 s{sT0}, s{sT0}, {base}')
                    s.k.VM(f'buffer_store_dwordx4 {vr(op)}, v{vP}, {srd(S_WS)}, s{sT0} offen {s.pflags}')
                out.append(st)
        return out
    def b_addr_full(s):
        I = s.I; t0, t1, t2, t3 = TMP+40, TMP+41, TMP+42, TMP+43
        I(f'v_lshrrev_b32 v{t0}, 4, v0\nv_lshrrev_b32 v{t1}, 2, v0\nv_and_b32 v{t1}, 3, v{t1}\nv_lshl_add_u32 v{t2}, v{t0}, 2, v{t1}')
        I(f'v_and_b32 v{t3}, 7, v{t2}\nv_lshlrev_b32 v{t2}, 8, v{t2}\nv_and_b32 v{t0}, 3, v0\nv_lshl_add_u32 v{t2}, v{t0}, 3, v{t2}')
        for t in range(4):
            I(f's_lshl_b32 s{sT0}, s{sFH}, 2\ns_add_u32 s{sT0}, s{sT0}, {t}\nv_xor_b32 v{t0}, s{sT0}, v{t3}\nv_lshl_add_u32 v{RA[t]}, v{t0}, 5, v{t2}')
            s.win[RA[t]] = 0
    def b_addr_half(s):
        I = s.I; t0, t1, t2, t3 = TMP+40, TMP+41, TMP+42, TMP+43
        I(f'v_lshrrev_b32 v{t0}, 4, v0\nv_lshrrev_b32 v{t1}, 2, v0\nv_and_b32 v{t1}, 3, v{t1}\nv_lshl_add_u32 v{t2}, v{t0}, 2, v{t1}')
        I(f'v_lshrrev_b32 v{t3}, 1, v{t2}\nv_and_b32 v{t3}, 3, v{t3}\nv_lshlrev_b32 v{t2}, 7, v{t2}\nv_and_b32 v{t0}, 3, v0\nv_lshl_add_u32 v{t2}, v{t0}, 3, v{t2}')
        for t in range(2):
            I(f's_lshl_b32 s{sT0}, s{sFH}, 1\ns_add_u32 s{sT0}, s{sT0}, {t}\nv_xor_b32 v{t0}, s{sT0}, v{t3}\nv_lshl_add_u32 v{RB[t]}, v{t0}, 5, v{t2}')
            s.win[RB[t]] = 0

    def attn_pack(s):
        k = s.k; I = s.I
        QF = lambda r: 144 + 4*r; KF = lambda i: 160 + 4*i; VP = lambda i: 180 + 2*i; V1P = lambda i: 190 + 2*i
        aQ = lambda r: ACC0 + 4*r; aK = lambda r: ACC0 + 16 + 4*r; aZ = lambda r: ACC0 + 32 + 4*r; aV = lambda r: ACC0 + 48 + 4*r
        SEL, CO = 200, 204
        I(f'v_mov_b32 v{SEL}, 0\nv_mov_b32 v{SEL+1}, 0\nv_mov_b32 v{SEL+3}, 0')
        I(f'v_mov_b32 v208, 0x3f80\nv_mov_b32 v209, 0x3f800000\nv_mov_b32 v{SEL+2}, 0')
        I(f'v_cmp_eq_u32 vcc, 32, v0\nv_cndmask_b32 v{SEL+2}, v{SEL+2}, v208, vcc\nv_cmp_eq_u32 vcc, 33, v0\nv_cndmask_b32 v{SEL+2}, v{SEL+2}, v209, vcc')
        I(f'v_and_b32 v208, 3, v0\nv_cmp_eq_u32 vcc, 2, v208\nv_mov_b32 v209, 0\nv_cndmask_b32 v{CO}, v209, 1.0, vcc')
        I(f'v_mov_b32 v{CO+1}, v{CO}\nv_mov_b32 v{CO+2}, v{CO}\nv_mov_b32 v{CO+3}, v{CO}')
        order = [3, 0, 1, 2]
        for r in order:
            t = 208 + 4*(r & 1)
            I(f'v_cndmask_b32 v{t}, v{aZ(r)}, v{aZ(r)+2}, {sp(sFHM)}\nv_cndmask_b32 v{t+1}, v{aZ(r)+1}, v{aZ(r)+3}, {sp(sFHM)}')
            I(f'v_cvt_pk_bf16_f32 v{KF(r+1)}, v{aK(r)}, v{aK(r)+1}\nv_cvt_pk_bf16_f32 v{KF(r+1)+1}, v{aK(r)+2}, v{aK(r)+3}')
            I(f'v_cvt_pk_bf16_f32 v{KF(r+1)+2}, v{t}, v{t+1}\nv_mov_b32 v{KF(r+1)+3}, 0')
            I(f'v_cvt_pk_bf16_f32 v{VP(r+1)}, v{aV(r)}, v{aV(r)+1}\nv_cvt_pk_bf16_f32 v{VP(r+1)+1}, v{aV(r)+2}, v{aV(r)+3}')
            I(f'v_mfma_f32_16x16x32_bf16 {vr(aZ(r))}, {vr(KF(r+1))}, {vr(SEL)}, {vr(CO)}')
            I(f'v_mov_b32 v{t+2}, v{KF(r+1)+2}\nv_mov_b32 v{t+3}, v{KF(r+1)+2}')
            I(f'v_cvt_pk_bf16_f32 v{QF(r)}, v{aQ(r)}, v{aQ(r)+1}\nv_cvt_pk_bf16_f32 v{QF(r)+1}, v{aQ(r)+2}, v{aQ(r)+3}')
            I(f'v_permlane16_swap_b32 v{t+2}, v{t+3}')
            I(f'v_mov_b32 v{QF(r)+3}, 0\nv_cndmask_b32 v{QF(r)+2}, v{QF(r)+3}, v{t+2}, {sp(sG1)}')
            I(f'v_cvt_pk_bf16_f32 v{V1P(r+1)}, v{aZ(r)}, v{aZ(r)+1}\nv_cvt_pk_bf16_f32 v{V1P(r+1)+1}, v{aZ(r)+2}, v{aZ(r)+3}')
            if r == 3:
                k.VM(f'buffer_store_dwordx4 {vr(KF(4))}, v{vHS}, {srd(S_WS)}, 0 offen sc1')
                k.VM(f'buffer_store_dwordx2 v[{VP(4)}:{VP(4)+1}], v{vHS}, {srd(S_WS)}, 0 offen offset:1024 sc1')
                s.halo_st = k.VM(f'buffer_store_dwordx2 v[{V1P(4)}:{V1P(4)+1}], v{vHS}, {srd(S_WS)}, 0 offen offset:1032 sc1')
    def attn_units(s, rhos, nopred_mask=False):
        k = s.k; I = s.I
        QF = lambda r: 144 + 4*r; KF = lambda i: 160 + 4*i; VP = lambda i: 180 + 2*i; V1P = lambda i: 190 + 2*i
        base = {r: (ACC0 + 16*n if len(rhos) > 1 else 208) for n, r in enumerate(rhos)}
        for r in rhos:
            b = base[r]
            I(f'v_mfma_f32_16x16x32_bf16 {vr(b)}, {vr(KF(r))}, {vr(QF(r))}, 0')
            I(f'v_mfma_f32_16x16x32_bf16 {vr(b+4)}, {vr(KF(r+1))}, {vr(QF(r))}, 0')
        mp = MP
        if nopred_mask:
            mp = [40, 42, 44, 46]
            I(f's_cmp_eq_u32 s{sNOPRED}, 1')
            for j in range(4): I(f's_cselect_b64 {sp(mp[j])}, 0, {sp(MP[j])}')
        for r in rhos: I(f'v_mov_b32 v{base[r]+8}, s{sNEG}')
        for j in range(4):
            for r in rhos:
                b = base[r]
                I(f'v_cndmask_b32 v{b+j}, v{b+8}, v{b+j}, {sp(mp[j])}\nv_cndmask_b32 v{b+4+j}, v{b+8}, v{b+4+j}, {sp(MC[j])}')
        for r in rhos:
            b = base[r]; I(f'v_max3_f32 v{b+9}, v{b}, v{b+1}, v{b+2}')
        for r in rhos:
            b = base[r]; I(f'v_max3_f32 v{b+10}, v{b+3}, v{b+4}, v{b+5}')
        for r in rhos:
            b = base[r]; I(f'v_max3_f32 v{b+9}, v{b+9}, v{b+6}, v{b+7}')
        for r in rhos:
            b = base[r]; I(f'v_max_f32 v{b+9}, v{b+9}, v{b+10}')
        for sw in ('v_permlane16_swap_b32', 'v_permlane32_swap_b32'):
            for r in rhos:
                b = base[r]; I(f'v_mov_b32 v{b+10}, v{b+9}')
            for r in rhos:
                b = base[r]; I(f'{sw} v{b+9}, v{b+10}')
            for r in rhos:
                b = base[r]; I(f'v_max_f32 v{b+9}, v{b+9}, v{b+10}')
        for r in rhos:
            b = base[r]; I(f'v_mul_f32 v{b+9}, s{sC}, v{b+9}')
        for j in range(8):
            for r in rhos:
                b = base[r]; I(f'v_fma_f32 v{b+j}, v{b+j}, s{sC}, -v{b+9}')
        for j in range(8):
            for r in rhos:
                b = base[r]; I(f'v_exp_f32 v{b+j}, v{b+j}')
        for j in range(4):
            for r in rhos:
                b = base[r]; I(f'v_cvt_pk_bf16_f32 v{b+12+j}, v{b+2*j}, v{b+2*j+1}')
        for r in rhos:
            b = base[r]
            I(f'v_mfma_f32_16x16x32_bf16 {vr(b)}, {vr(VP(r))}, {vr(b+12)}, 0')
            I(f'v_mfma_f32_16x16x32_bf16 {vr(b+4)}, {vr(V1P(r))}, {vr(b+12)}, 0')
        for r in rhos:
            b = base[r]; I(f'v_rcp_f32 v{b+8}, v{b+6}')
        for j in range(6):
            for r in rhos:
                b = base[r]; I(f'v_mul_f32 v{b+j}, v{b+j}, v{b+8}')
        for r in rhos:
            b = base[r]
            I(f'v_cvt_pk_bf16_f32 v{b+8}, v{b}, v{b+1}\nv_cvt_pk_bf16_f32 v{b+9}, v{b+2}, v{b+3}\nv_cvt_pk_bf16_f32 v{b+10}, v{b+4}, v{b+5}')
        for r in rhos:
            b = base[r]
            I(f's_mov_b32 s{sT0}, {r*18432}')
            k.VM(f'buffer_store_dwordx2 v[{b+8}:{b+9}], v{vOM}, {srd(S_WS)}, s{sT0} offen')
            k.VM(f'buffer_store_dword v{b+10}, v{vOE}, {srd(S_WS)}, s{sT0} offen')
    def set_flag(s):
        k = s.k
        k.wait_vm(s.halo_st)
        s.I(f'v_mov_b32 v{vT}, s{sFLAGBIT}')
        k.VM(f'buffer_atomic_add v{vT}, v{vFS}, {srd(S_DBG)}, 0 offen')
    def poll_issue(s):
        s.poll_tok = s.k.VM(f'buffer_load_dword v{vT4}, v{vFL}, {srd(S_DBG)}, 0 offen sc1')
    def poll_check_and_load(s):
        k = s.k; I = s.I
        k.wait_vm(s.poll_tok)
        I(f'v_readfirstlane_b32 s{sT0}, v{vT4}')
        I(f's_and_b32 s{sT0}, s{sT0}, s{sFLAGBIT}\ns_or_b32 s{sT0}, s{sT0}, s{sNOPRED}\ns_cmp_lg_u32 s{sT0}, 0\ns_cbranch_scc1 L1_flagok')
        k.label('L1_spin')
        I(f's_sleep 4\nbuffer_load_dword v{vT4}, v{vFL}, {srd(S_DBG)}, 0 offen sc1\ns_waitcnt vmcnt(0)')
        I(f'v_readfirstlane_b32 s{sT0}, v{vT4}')
        I(f's_and_b32 s{sT0}, s{sT0}, s{sFLAGBIT}\ns_cmp_lg_u32 s{sT0}, 0\ns_cbranch_scc0 L1_spin')
        k.label('L1_flagok')
        k.VM(f'buffer_load_dwordx4 {vr(160)}, v{vHL}, {srd(S_WS)}, 0 offen sc1')
        k.VM(f'buffer_load_dwordx2 v[180:181], v{vHL}, {srd(S_WS)}, 0 offen offset:1024 sc1')
        s.halo_ld = k.VM(f'buffer_load_dwordx2 v[190:191], v{vHL}, {srd(S_WS)}, 0 offen offset:1032 sc1')

    def dump_regs(s, regs):
        k = s.k; I = s.I
        k.wait_all()
        I('s_nop 7\ns_nop 7')
        n = len(regs)
        I(f's_lshl_b32 s90, s2, 2\ns_add_u32 s90, s90, s{sW}\ns_mul_i32 s90, s90, {n*256}\ns_add_u32 s90, s90, {WS_DBG + (1<<20)}')
        I(f'v_lshlrev_b32 v{vT2}, 2, v0')
        for r in regs:
            if r[0] == 'a': I(f'v_accvgpr_read_b32 v{vT}, {r}'); r = f'v{vT}'
            I(f'buffer_store_dword {r}, v{vT2}, {srd(S_WS)}, s90 offen\ns_waitcnt vmcnt(0)\ns_add_u32 s90, s90, 256')
        I('s_endpgm')

    def build(s):
        k = s.k; I = s.I; P = s.P
        s.G = s.build_groups(); s.btok = {}; s.after_barrier = {}; s.cur_due = 10**9
        first = {}
        for i, g in enumerate(s.G): first.setdefault(g['step'], i)
        s.stamp0 = True
        s.prologue()
        s.stamp()
        s.layernorm()
        s.stamp()
        s.normalize(range(P))
        for f in s.x_write_items(0): f()
        s.barrier(0)
        for f in s.x_read_items(0): f()
        s.read_limit = first[18]
        s.prime(0)
        s.normalize(range(P, 18))
        s.stamp()
        if s.stop == 'ln':
            s.dump_regs([f'v{r}' for r in range(XO, 256)]); return
        hooks = {}
        for st in range(18):
            items = []
            if st % P == 0: items += s.x_write_items(st // P + 1)
            if st + 1 < 18:
                if (st + 1) % P == 0: s.after_barrier[st + 1] = s.x_read_items(st + 1)
                else: items = s.x_read_items(st + 1) + items
            hooks[st] = (lambda items=items: s.q_work.extend(items))
        s.run_groups(0, first[18], hooks)
        s.drain_work()
        s.stamp()
        if s.stop == 'qkv':
            s.dump_regs([f'v{r}' for r in range(ACC0, ACC0+64)] + [f'a{r}' for r in range(256)] + [f'v{r}' for r in range(112, 144)]); return
        s.attn_pack()
        s.stamp()
        s.attn_units([1, 2, 3])
        s.stamp()
        s.set_flag()
        s.b_addr_full()
        s.stamp()
        if s.stop == 'attn':
            s.poll_issue(); s.poll_check_and_load(); k.wait_vm(s.halo_ld); s.attn_units([0], nopred_mask=True)
            k.wait_all(); I('s_endpgm'); return
        s.read_limit = first[36]
        s.barrier(18 // P)
        s.prime(first[18])
        def pc():
            s.stamp(); s.poll_check_and_load(); s.stamp()
        hooks = {18 + 5: s.poll_issue, 18 + 11: pc}
        s.run_groups(first[18], first[36], hooks)
        s.drain_work()
        k.wait_vm(s.halo_ld)
        s.attn_units([0], nopred_mask=True)
        s.stamp()
        s.read_limit = 10**9
        if 36 % P == 0: s.barrier(36 // P)
        s.prime(first[36])
        bdue = lambda ks: (98 + ks) // P
        def act(acc, c):
            def f():
                s.cur_due = bdue(2*c); s.q_work.extend(s.act_items(acc, c))
            return f
        hooks = {36: act(ACC0, 0), 54: act(ACC1, 1), 72: act(ACC0, 2), 90: act(ACC1, 3)}
        def h98(): s.q_work.extend(s.h_read_items(0))
        hooks[98] = h98
        for ks in range(1, 9):
            def f(ks=ks):
                if ks == 1:
                    s.rate = 3
                    s.cur_due = bdue(8); s.q_work.extend(s.h_read_items(1) + s.act_half_items(ACC0))
                else: s.q_work[0:0] = s.h_read_items(ks)
                if ks == 5: s.rate = 2
            hooks[99 + ks - 1] = f
        def outp(acc, p): return lambda: s.q_work.extend(s.out_items(acc, p))
        hooks[108] = outp(ACC1, 0); hooks[117] = outp(ACC0, 1); hooks[126] = outp(ACC1, 2); hooks[135] = outp(ACC0, 3)
        def bh(): s.b_addr_half()
        hooks[112] = bh
        flush_at = {54, 72, 90, 99, 108, 117, 126, 135}
        bounds = [36, 54, 72, 90, 99, 108, 117, 126, 135, 140]
        for a, b in zip(bounds[:-1], bounds[1:]):
            ib = first[b] if b < 140 else len(s.G)
            s.run_groups(first[a], ib, hooks)
            s.drain_work()
            if s.stop == 'A' and b == 99:
                k.wait_all(); I('s_barrier')
                s.cur_due = 10**9
                for f in s.act_half_items(ACC0): f()
                k.wait_all(); I('s_barrier')
                regs = []
                for ks in range(9):
                    for f in s.h_read_items(ks): f()
                    k.wait_lg_all()
                s.dump_regs([f'a{r}' for r in range(144)]); return
            if b in (54, 90, 99, 135): s.stamp()
        for f in s.out_items(ACC1, 4): f()
        s.stamp()
        k.wait_all()
        k.label('L1_end_body')
        I('s_endpgm')

def gen_k1(name, **kw):
    g = K1(**kw)
    g.k.raw(f'.globl {name}'); g.k.raw('.p2align 8'); g.k.raw(f'.type {name},@function'); g.k.label(name)
    g.build()
    g.k.label('L1_end'); g.k.I('s_endpgm')
    return g.k.text(), g
```

```python
from core import *
from k1 import WS_P, WS_OF, WS_SIZE, WS_DBG, srd, sp, vr, fhex
S_WO, S_X, S_OUT, S_WS = 8, 12, 16, 20
sW, sRB, sCB, sT0, sT1, sT2, sOFF = 24, 25, 26, 27, 28, 29, 30
class K2:
    def __init__(s, stamps=False, nring=8):
        s.k = K(); s.stamps = stamps; s.nstamp = 0; s.nring = nring
    def stamp(s):
        if not s.stamps: return
        k = s.k; i = s.nstamp; s.nstamp += 1
        k.I('s_memrealtime s[40:41]\ns_waitcnt lgkmcnt(0)'); k.lg_done = k.lg
        k.I(f'v_mov_b32 v14, s40\ns_lshl_b32 s42, s2, 2\ns_add_u32 s42, s42, s{sW}\ns_lshl_b32 s42, s42, 7\ns_add_u32 s42, s42, {WS_DBG + (512<<10) + 4*i}\nv_mov_b32 v15, 0')
        k.VM(f'buffer_store_dword v14, v15, {srd(S_WS)}, s42 offen')
    def build(s):
        k = s.k; I = k.I
        NR = s.nring
        OFR = 16; PR = OFR + 72; SA = PR + 8*NR; YA = SA + 16; FR = YA + 16; SEL = FR + 16; XR = SEL + 6
        s.nvgpr = XR + 8 + 16; s.accum = (s.nvgpr + 3)//4*4; s.nvgpr = s.accum
        TM = XR + 8
        I('s_cmp_ge_u32 s2, 288\ns_cbranch_scc1 L2_end')
        I('s_load_dwordx2 s[4:5], s[0:1], 0\ns_load_dwordx2 s[6:7], s[0:1], 16\ns_load_dwordx2 s[32:33], s[0:1], 56\ns_load_dwordx2 s[34:35], s[0:1], 72')
        I(f'v_lshrrev_b32 v1, 6, v0\nv_and_b32 v0, 63, v0\nv_readfirstlane_b32 s{sW}, v1')
        I(f's_lshr_b32 s{sT0}, s2, 3\ns_mul_i32 s{sT1}, s{sT0}, 57\ns_lshr_b32 s{sT1}, s{sT1}, 9\ns_mul_i32 s{sT2}, s{sT1}, 9\ns_sub_u32 s{sCB}, s{sT0}, s{sT2}')
        I(f's_and_b32 s{sRB}, s2, 7\ns_lshl_b32 s{sRB}, s{sRB}, 2\ns_add_u32 s{sRB}, s{sRB}, s{sT1}')
        I(f's_lshl_b32 s{sT0}, s{sRB}, 2\ns_add_u32 s{sT0}, s{sT0}, s{sW}')
        I(f's_mul_i32 s{sT1}, s{sT0}, {18*1024}\nv_lshlrev_b32 v2, 4, v0\nv_add_u32 v2, s{sT1}, v2')
        I(f's_lshl_b32 s{sT1}, s{sCB}, 11\nv_add_u32 v3, s{sT1}, v2')
        I('s_waitcnt lgkmcnt(0)')
        def mk(d, b, n): I(f's_mov_b32 s{d}, s{b}\ns_and_b32 s{d+1}, s{b+1}, 0xffff\ns_mov_b32 s{d+2}, {n}\ns_mov_b32 s{d+3}, 0x20000')
        mk(S_WS, 34, WS_SIZE); mk(S_WO, 6, 576*1152); mk(S_X, 4, 2048*1152); mk(S_OUT, 32, 2048*1152)
        s.stamp()
        ptok = {}
        def pload(j):
            for u in range(2):
                r = PR + 8*(j % NR) + 4*u
                I(f's_mov_b32 s{sOFF}, {WS_P + j*128*18432}')
                ptok[j] = k.VM(f'buffer_load_dwordx4 {vr(r)}, v3, {srd(S_WS)}, s{sOFF} offen offset:{1024*u}')
        I('v_lshrrev_b32 v4, 3, v0\nv_lshrrev_b32 v5, 1, v4\nv_and_b32 v6, 7, v0\nv_lshrrev_b32 v6, 1, v6\nv_xor_b32 v5, v5, v6\nv_and_b32 v5, 3, v5\nv_lshlrev_b32 v5, 5, v5\nv_and_b32 v6, 1, v0\nv_lshl_add_u32 v5, v6, 4, v5')
        I(f's_lshl_b32 s{sT1}, s{sCB}, 7\nv_add_u32 v5, s{sT1}, v5')
        I(f's_lshl_b32 s{sT1}, s{sW}, 3\ns_lshr_b32 s{sT2}, s{sW}, 1\ns_lshl_b32 s{sT2}, s{sT2}, 2\ns_add_u32 s{sT1}, s{sT1}, s{sT2}')
        I(f'v_add_u32 v6, s{sT1}, v4\nv_mul_u32_u24 v6, 0x480, v6\nv_add_u32 v6, v6, v5')
        I(f's_and_b32 s{sT1}, s{sW}, 1\ns_lshl_b32 s{sT1}, s{sT1}, 2\ns_lshr_b32 s{sT2}, s{sW}, 1\ns_add_u32 s{sT1}, s{sT1}, s{sT2}\ns_mul_i32 s{sT1}, s{sT1}, 36\ns_add_u32 s{sT1}, s{sT1}, 16')
        I(f'v_lshrrev_b32 v7, 2, v4\nv_mul_u32_u24 v7, 72, v7\nv_and_b32 v8, 3, v4\nv_add_u32 v7, v7, v8\nv_add_u32 v7, s{sT1}, v7\nv_mul_u32_u24 v7, 0x480, v7\nv_add_u32 v7, v7, v5')
        I(f's_lshl_b32 s{sT2}, s{sW}, 10')
        for ks in range(18):
            I(f's_add_u32 m0, s{sT2}, {ks*4096}')
            if ks < 16:
                I(f's_mov_b32 s{sOFF}, {36*ks*1152}'); wtok = k.VM(f'buffer_load_dwordx4 v6, {srd(S_WO)}, s{sOFF} offen lds')
            else:
                I(f's_mov_b32 s{sOFF}, {36*8*(ks-16)*1152}'); wtok = k.VM(f'buffer_load_dwordx4 v7, {srd(S_WO)}, s{sOFF} offen lds')
        otok = {}
        for ks in range(18):
            I(f's_mov_b32 s{sOFF}, {WS_OF + ks*1024}')
            otok[ks] = k.VM(f'buffer_load_dwordx4 {vr(OFR+4*ks)}, v2, {srd(S_WS)}, s{sOFF} offen')
        for j in range(NR): pload(j)
        I(f'v_and_b32 v8, 15, v0\nv_lshrrev_b32 v9, 4, v0\nv_lshrrev_b32 v10, 2, v8\nv_and_b32 v11, 3, v8')
        for r in (0, 1, 4, 5): I(f'v_mov_b32 v{SEL+r}, 0')
        I(f'v_mov_b32 v12, 0x3f80\nv_mov_b32 v13, 0x3f800000\nv_and_b32 v14, 1, v11\nv_cmp_eq_u32 vcc, 1, v14\nv_cndmask_b32 v12, v12, v13, vcc')
        I(f'v_cmp_eq_u32 vcc, v9, v10\nv_cndmask_b32 v12, 0, v12, vcc')
        I(f'v_cmp_gt_u32 vcc, 2, v11\nv_cndmask_b32 v{SEL+2}, 0, v12, vcc\nv_cndmask_b32 v{SEL+3}, v12, 0, vcc')
        I(f'v_lshrrev_b32 v14, 2, v0\nv_and_b32 v14, 3, v14\nv_lshl_add_u32 v14, v9, 2, v14\nv_lshrrev_b32 v15, 1, v14\nv_and_b32 v15, 3, v15')
        I(f'v_lshlrev_b32 v14, 7, v14\nv_and_b32 v4, 3, v0\nv_lshl_add_u32 v14, v4, 3, v14')
        for t in range(4): I(f'v_xor_b32 v4, {t}, v15\nv_lshl_add_u32 v{10+t}, v4, 5, v14')
        I(f's_lshl_b32 s{sT0}, s{sT0}, 4\nv_add_u32 v4, s{sT0}, v8\nv_mul_u32_u24 v4, 0x480, v4\nv_lshl_add_u32 v4, v9, 3, v4\ns_lshl_b32 s{sT1}, s{sCB}, 7\nv_add_u32 v4, s{sT1}, v4')
        def consume(j):
            k.wait_vm(ptok[j])
            for u in range(2):
                r = PR + 8*(j % NR) + 4*u
                for tt in range(2):
                    a = YA + 4*(2*u + tt); A = vr(SEL+2) if tt == 0 else vr(SEL)
                    I(f'v_mfma_f32_16x16x32_bf16 {vr(a)}, {A}, {vr(r)}, {"0" if j == 0 else vr(a)}')
        for j in range(NR):
            consume(j)
            if j + NR < 16: pload(j + NR)
        xtok = None
        for t in range(4): xtok = k.VM(f'buffer_load_dwordx2 v[{XR+2*t}:{XR+2*t+1}], v4, {srd(S_X)}, 0 offen offset:{32*t}')
        s.stamp()
        k.wait_vm(otok[17])
        I('s_barrier')
        groups = [(ks, t) for ks in range(18) for t in range(4)]
        pre = 3; toks = {}
        hi = [False]
        def rd(i):
            ks, t = groups[i]; fr = FR + 4*(i % 4)
            if ks >= 16 and not hi[0]:
                for tt in range(4): I(f'v_add_u32 v{10+tt}, 0x10000, v{10+tt}')
                hi[0] = True
            off = (ks*4096) & 0xffff
            k.DS(f'ds_read_b64_tr_b16 v[{fr}:{fr+1}], v{10+t} offset:{off}')
            toks[i] = k.DS(f'ds_read_b64_tr_b16 v[{fr+2}:{fr+3}], v{10+t} offset:{off+2048}')
        for i in range(pre): rd(i)
        for i, (ks, t) in enumerate(groups):
            k.wait_lg(toks[i])
            fr = FR + 4*(i % 4); a = SA + 4*t
            I(f'v_mfma_f32_16x16x32_bf16 {vr(a)}, {vr(fr)}, {vr(OFR+4*ks)}, {"0" if ks == 0 else vr(a)}')
            if i + pre < len(groups): rd(i + pre)
        s.stamp()
        for j in range(NR, 16): consume(j)
        k.wait_vm(xtok)
        s.stamp()
        c = fhex(-1.4426950408889634)
        I(f's_mov_b32 s{sT0}, {c}\ns_mov_b32 s{sT1}, 0xffff0000')
        for t in range(4):
            y = YA + 4*t; sa = SA + 4*t; tm = TM + 4*(t & 1); xx = XR + 2*t
            for j in range(4): I(f'v_mul_f32 v{tm+j}, s{sT0}, v{y+j}')
            for j in range(4): I(f'v_exp_f32 v{tm+j}, v{tm+j}')
            for j in range(4): I(f'v_add_f32 v{tm+j}, 1.0, v{tm+j}')
            for j in range(4): I(f'v_rcp_f32 v{tm+j}, v{tm+j}')
            for j in range(4): I(f'v_mul_f32 v{y+j}, v{y+j}, v{tm+j}')
            I(f'v_lshlrev_b32 v{tm}, 16, v{xx}\nv_and_b32 v{tm+1}, s{sT1}, v{xx}\nv_lshlrev_b32 v{tm+2}, 16, v{xx+1}\nv_and_b32 v{tm+3}, s{sT1}, v{xx+1}')
            for j in range(4): I(f'v_fmac_f32 v{tm+j}, v{sa+j}, v{y+j}')
            I(f'v_cvt_pk_bf16_f32 v{xx}, v{tm}, v{tm+1}\nv_cvt_pk_bf16_f32 v{xx+1}, v{tm+2}, v{tm+3}')
            k.VM(f'buffer_store_dwordx2 v[{xx}:{xx+1}], v4, {srd(S_OUT)}, 0 offen offset:{32*t}')
        s.stamp()
        k.wait_all()
        I('s_endpgm')
def gen_k2(name, **kw):
    g = K2(**kw)
    g.k.raw(f'.globl {name}'); g.k.raw('.p2align 8'); g.k.raw(f'.type {name},@function'); g.k.label(name)
    g.build()
    g.k.label('L2_end'); g.k.I('s_endpgm')
    return g.k.text(), g
```

```python
import sys, os, json
sys.path.insert(0, os.path.dirname(__file__))
import build
k1kw = json.loads(sys.argv[2]) if len(sys.argv) > 2 else {}
k2kw = json.loads(sys.argv[3]) if len(sys.argv) > 3 else {}
hdr = open('recurrent_scan__sliding_local_dilated__glu_gated_reglu__prompt.s.ref').read().split('\n')
hdr = [l for l in hdr if l.startswith(';') and '@launch' not in l and 'Override launch' not in l and 'grid=ceil' not in l][:12]
hdr = [l for l in hdr if l.startswith('; Kernarg') or l.startswith(';   offset')]
txt = '\n'.join(hdr) + '\n' + build.make(k1kw, True, k2kw)
open(sys.argv[1], 'w').write(txt)
print(len(txt), 'bytes')
```
